```python
import torch

def _softmax(x, axis=-1):
    return torch.softmax(x, dim=axis)
def _gelu(x):
    return torch.nn.functional.gelu(x, approximate="tanh")
def _silu(x):
    return torch.nn.functional.silu(x)
def _sigmoid(x):
    return torch.sigmoid(x)
def _layernorm(x, axis=-1, eps=1e-5):
    m = x.mean(dim=axis, keepdim=True)
    v = x.var(dim=axis, keepdim=True, unbiased=False)
    return (x - m) / torch.sqrt(v + eps)
def _scatter_add(tgt, idx, src, axis=0):
    return tgt.clone().index_add_(axis, idx, src)
def _segment_sum(src, seg, n):
    out = torch.zeros((n,) + src.shape[1:], dtype=src.dtype)
    return out.index_add_(0, seg, src)
def _pad(x, pw):
    flat = tuple(v for pair in reversed(pw) for v in pair)
    return torch.nn.functional.pad(x, flat)

kernel_name = 'standalone__mha_softmax__near_ridge'

def setup_inputs():

    _w = (lambda a: (lambda t: t.to(torch.bfloat16) if t.is_floating_point() else t)(torch.as_tensor(a)))
    B, H, Sq, Sk, D = 8, 32, 1024, 512, 128
    return {
        "q": _w((lambda *s: torch.randn(*s, dtype=torch.bfloat16) * 0.8)(B, H, Sq, D)),
        "k": _w((lambda *s: torch.randn(*s, dtype=torch.bfloat16) * 0.8)(B, H, Sk, D)),
        "v": _w((lambda *s: torch.randn(*s, dtype=torch.bfloat16) * 0.05)(B, H, Sk, D)),
    }

def reference(q, k, v):
    scale = q.shape[-1] ** -0.5
    scores = torch.einsum("bhqd,bhkd->bhqk", q, k) * scale
    p = _softmax(scores, axis=-1)
    return torch.einsum("bhqk,bhkd->bhqd", p, v)
```

```python
import re

COST = dict(mfma=0, valu=4, trans=8, ds=4, dsw=20, dma=8, gld=8, st=24, salu=4, wait=4, bar=16, nop=4)


def R(f, a, n=1):
    return [f"{f}{i}" for i in range(a, a + n)]


def rs(f, a, n=1):
    return f"{f}{a}" if n == 1 else f"{f}[{a}:{a + n - 1}]"


class Ins:
    def __init__(self, text, kind, rd=(), wr=(), srcc=(), data=(), after=(), done_of=(), tag="", passes=8):
        self.text = text
        self.kind = kind
        self.rd = list(rd)
        self.wr = list(wr)
        self.srcc = list(srcc)
        self.data = list(data)
        self.after = list(after)
        self.done_of = list(done_of)
        self.tag = tag
        self.passes = passes
        self.pos = None
        self.gap = None
        self.done = False
        self.stream = None
        self.rel = -10**9
        self.soft = None
        self.cost = COST[kind]

    def __repr__(self):
        return f"<{self.text}>"


def is_valu(k):
    return k in ("valu", "trans")


class Haz:
    def __init__(self):
        self.ws = 0
        self.valu_w = {}
        self.trans_w = {}
        self.mfma_w = {}
        self.srcc_r = {}
        self.st_r = {}
        self.m0_w = -100

    def need(self, i):
        n = 0
        c = self.ws

        def req(p, k):
            nonlocal n
            n = max(n, k - (c - p - 1))

        k = i.kind
        perm = "permlane" in i.text
        rfl = "readfirstlane" in i.text or "readlane" in i.text
        for r in i.rd:
            if r in self.valu_w:
                p = self.valu_w[r]
                if r[0] in "va" and r != "vcc":
                    if k == "mfma": req(p, 2)
                    if perm: req(p, 2)
                    if rfl: req(p, 1)
                else:
                    if is_valu(k): req(p, 2)
                    if k in ("dma", "gld", "st"): req(p, 5)
                    if k == "salu": req(p, 1)
            if r in self.trans_w and k != "trans":
                req(self.trans_w[r], 1)
            if r in self.mfma_w:
                p, d, ps = self.mfma_w[r]
                big = {4: 8, 8: 12}[ps]
                if k == "mfma":
                    if r in i.srcc:
                        if tuple(i.srcc) != d or ps != i.passes: req(p, big - 2)
                        if r in i.rd and i.rd.count(r) > 1: req(p, big)
                    else:
                        req(p, big)
                else:
                    req(p, big)
            if r == "m0" and k == "dma":
                req(self.m0_w, 1)
        for r in i.wr:
            if r in self.mfma_w and k != "mfma":
                p, d, ps = self.mfma_w[r]
                req(p, {4: 8, 8: 12}[ps])
            if r in self.srcc_r and k != "mfma":
                p, ps = self.srcc_r[r]
                req(p, {4: 3, 8: 7}[ps])
            if r in self.st_r:
                req(self.st_r[r], 2)
        return n

    def push(self, i):
        c = self.ws
        k = i.kind
        for r in i.wr:
            self.valu_w.pop(r, None); self.trans_w.pop(r, None)
            if k != "mfma": self.mfma_w.pop(r, None)
            if is_valu(k): self.valu_w[r] = c
            if k == "trans": self.trans_w[r] = c
            if k == "mfma": self.mfma_w[r] = (c, tuple(i.wr), i.passes)
            if r == "m0": self.m0_w = c
        for r in i.srcc: self.srcc_r[r] = (c, i.passes)
        for r in i.data: self.st_r[r] = c
        if k == "nop":
            self.ws += int(i.text.split()[1]) + 1
        else:
            self.ws += 1


LGKM = ("ds", "dsw")
VM = ("dma", "gld", "st")


class Emit:
    def __init__(self):
        self.out = []
        self.h = Haz()
        self.lq = []
        self.vq = []
        self.gap = -1
        self.pend = {}

    def raw(self, i):
        assert i.pos is None, i
        n = self.h.need(i)
        assert n <= 0, (i, n)
        for a in i.after: assert a.pos is not None, (i, "after", a)
        for a in i.done_of: assert a.done, (i, "done_of", a)
        for r in i.rd + i.wr:
            p = self.pend.get(r)
            assert p is None or p.done, (i, "pending load", p)
        i.pos = len(self.out); i.gap = self.gap
        self.out.append(i); self.h.push(i)
        if i.kind in LGKM:
            self.lq.append(i); assert len(self.lq) <= 15 or True
        if i.kind in VM:
            self.vq.append(i); assert len(self.vq) <= 63, "vmcnt overflow"
        if i.kind in ("ds", "gld"):
            for r in i.wr: self.pend[r] = i
        return i

    def deps(self, i):
        d = list(i.done_of)
        for r in i.rd + i.wr:
            p = self.pend.get(r)
            if p is not None: d.append(p)
        return [x for x in d if not x.done]

    def counts_for(self, ops):
        vm = lg = None
        for x in ops:
            assert x.pos is not None, x
            if x.done: continue
            if x.kind in LGKM:
                n = len(self.lq) - 1 - self.lq.index(x); lg = n if lg is None else min(lg, n)
            else:
                n = len(self.vq) - 1 - self.vq.index(x); vm = n if vm is None else min(vm, n)
        return vm, lg

    def wait(self, vm=None, lg=None):
        if vm is None and lg is None: return None
        t = "s_waitcnt"
        if vm is not None:
            vm = min(vm, 62)
            t += f" vmcnt({vm})"
            k = len(self.vq) - vm
            if k > 0:
                for x in self.vq[:k]: x.done = True
                self.vq = self.vq[k:]
        if lg is not None:
            lg = min(lg, 14)
            t += f" lgkmcnt({lg})"
            k = len(self.lq) - lg
            if k > 0:
                for x in self.lq[:k]: x.done = True
                self.lq = self.lq[k:]
        return self.raw(Ins(t, "wait"))

    def wait_for(self, ops):
        return self.wait(*self.counts_for(ops))

    def ready(self, i):
        return (all(a.pos is not None for a in i.after) and not self.deps(i) and self.h.need(i) <= 0)

    def force(self, i):
        d = self.deps(i)
        if d: self.wait_for(d)
        n = self.h.need(i)
        while n > 0:
            k = min(n, 16)
            self.raw(Ins(f"s_nop {k - 1}", "nop"))
            n -= k
        return self.raw(i)

    def text(self):
        return "".join(i.text + "\n" for i in self.out)


_reg = re.compile(r"\b([vas])(\d+)\b|\b([vas])\[(\d+):(\d+)\]|\b(m0|vcc)\b")


def regs_of(op):
    o = []
    for m in _reg.finditer(op):
        if m.group(1): o.append(m.group(1) + m.group(2))
        elif m.group(3): o += R(m.group(3), int(m.group(4)), int(m.group(5)) - int(m.group(4)) + 1)
        else: o.append(m.group(6))
    return o


def check_decl(i):
    t = i.text.strip()
    if i.kind in ("wait", "bar", "nop"): return
    mn, _, rest = t.partition(" ")
    ops = [x.strip() for x in rest.split(",")]
    allr = set(regs_of(rest))
    decl = set(i.rd) | set(i.wr)
    extra = decl - allr - {"m0", "scc", "vcc"}
    miss = allr - decl
    assert not miss and not extra, (t, "missing", miss, "extra", extra)
    first = set(regs_of(ops[0]))
    if i.kind in ("valu", "trans", "mfma", "ds", "gld", "salu") and not mn.startswith("s_cmp"):
        assert first <= set(i.wr), (t, "dst not declared")
        others = set(regs_of(",".join(ops[1:])))
        assert others <= set(i.rd), (t, "src not declared")
```

```python
import sys, struct, math, argparse
from fw import *

NAME = "standalone__mha_softmax__near_ridge"


class Cfg:
    nt_kv = ""
    nt_q = ""
    nt_o = ""
    DK = 7
    DV = 6
    AGE = 4
    D0 = 4
    VAGE = 100
    QB0 = 2
    DMAGAP = 2
    DMACOST = 12
    stamp = False
    force_slow = False
    pf_code = True
    lo_exp = -30
    hi_exp = 30


def f32bits(x):
    return struct.unpack("<I", struct.pack("<f", x))[0]


QST = 0; QSZ = 8320
NK = 8; KR = 4 * QSZ; KSZ = 8320
NV = 7; VR = KR + NK * KSZ; VSZ = 8192
LDS_BYTES = VR + NV * VSZ
assert LDS_BYTES <= 163840

PG = dict(a1=("v", 0), a2=("v", 64), c1=("a", 0), c2=("a", 64), c3=("a", 128))
QPG = {0: "a2", 1: "c2", 2: "a1", 3: "c3"}
OPG = {(0, 0): "a1", (0, 1): "c1", (1, 0): "a2", (1, 1): "c3", (2, 0): "c1", (2, 1): "c2", (3, 0): "a1", (3, 1): "a2"}
XH = {1: 0, 2: 1, 3: 0}
KF = 192; VF = 224
SB = [128, 144, 160]; PB = [176, 184, 192]
ET = [200, 208]
QT = [216, 220, 224]
SC = [228, 229, 230, 231]
vK, vV, vQ, vD, vO, vQB = 232, 233, 234, 235, 236, 237
vL = [[238, 239], [240, 241]]
vRI = [242, 243]
vT0, vT1 = 244, 245
vPF, vPA = 246, 247
sQ, sK, sV, sO = 8, 12, 16, 20
sWave = 3
sQ0, sKV0, sKVh = 28, 29, 30
sMK, sMV, sMQ = 31, 32, 33
sC, sMask, sLo, sRng = 34, 35, 36, 37
sOffK, sOffV, sOffQ = 38, 39, 56
sOffO = [57, 58]
sFl = 40
sMQB = 59

QO_BLK = 64 * 262144
KV_BLK = 64 * 131072
CSCALE = math.log2(math.e) / math.sqrt(128.0)


def salu(text, wr, rd=()):
    return Ins(text, "salu", rd=rd, wr=wr)


def valu(text, wr, rd, kind="valu"):
    return Ins(text, kind, rd=rd, wr=wr)


class Gen:
    def __init__(self, cfg):
        self.c = cfg
        self.E = Emit()
        self.streams = {k: [] for k in ("sm", "bg", "st", "ds", "dq", "dma", "dmq")}
        self.head = {k: 0 for k in self.streams}
        self.over = []
        self.last_dma = -99
        self.m0own = None

    def add(self, s, i):
        i.stream = s
        i.idx = len(self.streams[s])
        self.streams[s].append(i)
        return i

    def peek(self, s):
        h = self.head[s]
        return self.streams[s][h] if h < len(self.streams[s]) else None

    def take(self, s):
        i = self.peek(s)
        self.E.raw(i)
        self.head[s] += 1
        self.lock(s, i)
        return i

    def lock(self, s, i):
        if "m0" in i.wr:
            assert self.m0own in (None, s)
            self.m0own = s
        if i.kind == "dma":
            assert self.m0own == s
            n = self.peek(s)
            if n is None or n.kind != "dma": self.m0own = None

    def next_dma(self, s):
        for x in self.streams[s][self.head[s]:]:
            if x.kind == "dma": return x

    def force(self, i):
        if i.pos is not None: return
        assert i.stream is not None, ("cannot force", i)
        s = i.stream
        while i.pos is None:
            x = self.peek(s)
            for a in x.after + x.done_of:
                if a.pos is None: self.force(a)
            if "m0" in x.wr:
                y = self.next_dma(s)
                for a in y.after + y.done_of:
                    if a.pos is None: self.force(a)
                while self.m0own not in (None, s): self.force(self.next_dma(self.m0own))
            self.E.force(x)
            self.head[s] += 1
            self.lock(s, x)

    def dma_items(self, srd, soff_reg, soff_base, soff_imm, m0_base, pieces, flag, after=(), done_of=(), tag="", stream="dma"):
        out = []
        first = True
        for (m0i, off, so) in pieces:
            if first or so is not None:
                imm = soff_imm if so is None else so
                x = salu(f"s_add_u32 s{soff_reg}, s{soff_base}, {imm:#x}", [f"s{soff_reg}", "scc"], [f"s{soff_base}"])
                self.add(stream, x)
            if m0i is not None:
                x = salu(f"s_add_u32 m0, s{m0_base}, {m0i:#x}", ["m0", "scc"], [f"s{m0_base}"])
                self.add(stream, x)
            t = f"buffer_load_dwordx4 v{vD}, s[{srd}:{srd + 3}], s{soff_reg} offen"
            if off: t += f" offset:{off}"
            if flag: t += " " + flag
            t += " lds"
            d = Ins(t, "dma", rd=[f"v{vD}", f"s{soff_reg}", "m0"] + R("s", srd, 4), after=after, done_of=done_of, tag=tag)
            self.add(stream, d)
            out.append(d)
            first = False
        return out

    def dmaK(self, j, after=()):
        slot = j % NK
        so = (j >> 4) * KV_BLK + (j & 15) * 8192
        self.dK[j] = self.dma_items(sK, sOffK, sKV0, so, sMK, [(slot * KSZ, 0, None), (slot * KSZ + 16, 1024, None)], self.c.nt_kv, after, tag=f"K{j}")

    def dmaV(self, j, after=()):
        slot = j % NV
        so = (j >> 4) * KV_BLK + (j & 15) * 8192
        self.dV[j] = self.dma_items(sV, sOffV, sKV0, so, sMV, [(slot * VSZ, 0, None), (None, 1024, None)], self.c.nt_kv, after, tag=f"V{j}")

    def dmaQ(self, n, h, lo, hi, after=(), done_of=(), m0b=sMQ):
        so = n * QO_BLK + h * 8192
        pcs = []
        for p in range(lo, hi):
            pcs.append((p * 1040 - (p & 3) * 1024, (p & 3) * 1024, so + (p >> 2) * 4096 if (p == lo or p == 4) else None))
        self.dQ.setdefault((n, h), [])
        self.dQ[(n, h)] += self.dma_items(sQ, sOffQ, sQ0, None, m0b, pcs, self.c.nt_q, after, done_of, tag=f"Q{n}{h}", stream="dma" if n == 0 else "dmq")
        for x in self.dQ[(n, h)]: x.want = True

    def prescale(self, n, h, after, addr=vQ):
        f, base = PG[QPG[n]]
        last = []
        reads = []
        for s in range(8):
            dst = base + 32 * h + 4 * s
            if f == "v":
                raw = dst; war = []
            else:
                k = self.qt_i % len(QT); self.qt_i += 1
                raw = QT[k]; war = [self.qt_last[k]] if self.qt_last[k] else []
            off = (s >> 1) * 256 + (s & 1) * 32
            rd = Ins(f"ds_read_b128 v[{raw}:{raw + 3}], v{addr}" + (f" offset:{off}" if off else ""), "ds", rd=[f"v{addr}"], wr=R("v", raw, 4),
                     after=list(after) + war, done_of=self.dQ[(n, h)], tag="q")
            rd.want = True
            self.add("dq", rd); reads.append(rd)
            w = []
            for k2 in (0, 2):
                a, b = raw + k2, raw + k2 + 1
                seq = [
                    valu(f"v_lshlrev_b32 v{SC[0]}, 16, v{a}", [f"v{SC[0]}"], [f"v{a}"]),
                    valu(f"v_and_b32 v{SC[1]}, s{sMask}, v{a}", [f"v{SC[1]}"], [f"v{a}", f"s{sMask}"]),
                    valu(f"v_lshlrev_b32 v{SC[2]}, 16, v{b}", [f"v{SC[2]}"], [f"v{b}"]),
                    valu(f"v_and_b32 v{SC[3]}, s{sMask}, v{b}", [f"v{SC[3]}"], [f"v{b}", f"s{sMask}"]),
                ]
                for q in SC: seq.append(valu(f"v_mul_f32 v{q}, s{sC}, v{q}", [f"v{q}"], [f"v{q}", f"s{sC}"]))
                seq.append(valu(f"v_cvt_pk_bf16_f32 v{a}, v{SC[0]}, v{SC[1]}", [f"v{a}"], [f"v{SC[0]}", f"v{SC[1]}"]))
                seq.append(valu(f"v_cvt_pk_bf16_f32 v{b}, v{SC[2]}, v{SC[3]}", [f"v{b}"], [f"v{SC[2]}", f"v{SC[3]}"]))
                if f == "a":
                    seq.append(valu(f"v_accvgpr_write_b32 a{dst + k2}, v{a}", [f"a{dst + k2}"], [f"v{a}"]))
                    seq.append(valu(f"v_accvgpr_write_b32 a{dst + k2 + 1}, v{b}", [f"a{dst + k2 + 1}"], [f"v{b}"]))
                seq[0].after.append(rd)
                if f == "a": seq[-2].after += list(after)
                for x in seq: self.add("bg", x)
                w = seq
            if f == "a": self.qt_last[k] = w[-1]
            last.append(w[-1])
        self.qlast[(n, h)] = last
        self.qreads[(n, h)] = reads

    def epilogue(self, n, h):
        c = self.c
        l = vL[n & 1][h]; ri = vRI[h]
        k = 2 * n + h
        seq = [
            valu(f"v_mov_b32 v{vT0}, v{l}", [f"v{vT0}"], [f"v{l}"]),
            valu(f"v_permlane32_swap_b32 v{l}, v{vT0}", [f"v{l}", f"v{vT0}"], [f"v{l}", f"v{vT0}"]),
            valu(f"v_add_f32 v{vT0}, v{l}, v{vT0}", [f"v{vT0}"], [f"v{l}", f"v{vT0}"]),
            valu(f"v_rcp_f32 v{ri}, v{vT0}", [f"v{ri}"], [f"v{vT0}"], "trans"),
            valu(f"v_subrev_u32 v{vT0}, s{sLo}, v{vT0}", [f"v{vT0}"], [f"v{vT0}", f"s{sLo}"]),
            valu(f"v_cmp_le_u32 s[{sFl + 2 * k}:{sFl + 2 * k + 1}], s{sRng}, v{vT0}", R("s", sFl + 2 * k, 2), [f"v{vT0}", f"s{sRng}"]),
        ]
        seq[0].after.append(self.lastadd[(n, h)])
        for x in seq: self.add("bg", x)
        so = sOffO[h]
        x = salu(f"s_add_u32 s{so}, s{sQ0}, {n * QO_BLK + h * 8192:#x}", [f"s{so}", "scc"], [f"s{sQ0}"])
        self.add("st", x)
        f, base = PG[OPG[(n, h)]]
        u = 32 * n + 30 + h
        last = None
        for m in range(8):
            T = m >> 1
            src = base + 8 * m
            seq = []
            if f == "v":
                t = src
            else:
                e = self.et_i % 2; self.et_i += 1
                t = ET[e]
                for j in range(8):
                    seq.append(valu(f"v_accvgpr_read_b32 v{t + j}, a{src + j}", [f"v{t + j}"], [f"a{src + j}"]))
                if self.et_last[e]: seq[0].after.append(self.et_last[e])
                last = seq[-1]
            for j in range(8):
                seq.append(valu(f"v_mul_f32 v{t + j}, v{ri}, v{t + j}", [f"v{t + j}"], [f"v{t + j}", f"v{ri}"]))
            for j in range(4):
                seq.append(valu(f"v_cvt_pk_bf16_f32 v{t + j}, v{t + 2 * j}, v{t + 2 * j + 1}", [f"v{t + j}"], [f"v{t + 2 * j}", f"v{t + 2 * j + 1}"]))
            seq[0].after.append(self.pv_last[(u, T)])
            for x in seq: self.add("bg", x)
            txt = f"buffer_store_dwordx4 v[{t}:{t + 3}], v{vO}, s[{sO}:{sO + 3}], s{so} offen"
            if m: txt += f" offset:{32 * m}"
            if c.nt_o: txt += " " + c.nt_o
            st = Ins(txt, "st", rd=R("v", t, 4) + [f"v{vO}", f"s{so}"] + R("s", sO, 4), data=R("v", t, 4), after=[seq[-1]])
            self.add("st", st)
            if f == "v": last = st
            else: self.et_last[e] = st
        self.epi_last[(n, h)] = last

    def build(self):
        c = self.c; E = self.E
        self.dK, self.dV, self.dQ = {}, {}, {}
        self.qlast, self.qreads, self.lastadd, self.pv_last, self.epi_last = {}, {}, {}, {}, {}
        self.qt_i = 0; self.qt_last = [None] * len(QT); self.et_i = 0; self.et_last = [None, None]
        U = 128
        M = []; gq = {}; gp = {}

        def QK(u):
            n, h = u >> 5, u & 1
            f, base = PG[QPG[n]]
            sb = SB[u % 3]
            for s in range(8):
                q = base + 32 * h + 4 * s
                cc = "0" if s == 0 else rs("v", sb, 16)
                i = Ins(f"v_mfma_f32_32x32x16_bf16 {rs('v', sb, 16)}, {rs('a', KF + 4 * s, 4)}, {rs(f, q, 4)}, {cc}", "mfma",
                        rd=R("a", KF + 4 * s, 4) + R(f, q, 4) + ([] if s == 0 else R("v", sb, 16)), wr=R("v", sb, 16),
                        srcc=[] if s == 0 else R("v", sb, 16))
                gq[(u, s)] = len(M); M.append(i)

        def PV(u):
            n, h = u >> 5, u & 1
            f, base = PG[OPG[(n, h)]]
            pb = PB[u % 3]
            for s in range(2):
                for T in range(4):
                    j = 4 * s + T
                    o = base + 16 * T
                    zero = (u & 31) < 2 and s == 0
                    cc = "0" if zero else rs(f, o, 16)
                    i = Ins(f"v_mfma_f32_32x32x16_bf16 {rs(f, o, 16)}, {rs('a', VF + 4 * j, 4)}, {rs('v', pb + 4 * s, 4)}, {cc}", "mfma",
                            rd=R("a", VF + 4 * j, 4) + R("v", pb + 4 * s, 4) + ([] if zero else R(f, o, 16)), wr=R(f, o, 16),
                            srcc=[] if zero else R(f, o, 16))
                    gp[(u, j)] = len(M); M.append(i)
                    if s == 1: self.pv_last[(u, T)] = i

        QK(0); QK(1)
        for u in range(1, U + 1):
            if u + 1 < U: QK(u + 1)
            PV(u - 1)
        assert len(M) == 2048
        self.M = M
        bar = {}; bargap = {}
        for i in range(0, 65):
            bar[i] = Ins("s_barrier", "bar", tag=f"B{i}")
            if i >= 1: bargap[gq[(2 * i - 1, 0)] - 1] = i
        sm_last = {}
        for u in range(U):
            n, h = u >> 5, u & 1
            sb = SB[u % 3]; pb = PB[u % 3]
            l = vL[n & 1][h]
            first = (u & 31) < 2
            g0 = gq[(u, 7)] + c.D0
            pace = 0.7 if u >= U - 2 else 1.0
            ex, ad, cv = [], [], []
            for j in range(16):
                r = f"v{sb + j}"
                e = valu(f"v_exp_f32 {r}, {r}", [r], [r], "trans"); e.soft = g0 + int(j * pace); ex.append(e)
                if first and j == 0: a = None
                elif first and j == 1: a = valu(f"v_add_f32 v{l}, v{sb}, {r}", [f"v{l}"], [f"v{sb}", r])
                else: a = valu(f"v_add_f32 v{l}, v{l}, {r}", [f"v{l}"], [f"v{l}", r])
                if a: a.soft = g0 + int((j + 1) * pace)
                ad.append(a)
            for k in range(8):
                x = valu(f"v_cvt_pk_bf16_f32 v{pb + k}, v{sb + 2 * k}, v{sb + 2 * k + 1}", [f"v{pb + k}"], [f"v{sb + 2 * k}", f"v{sb + 2 * k + 1}"])
                x.soft = g0 + int((2 * k + 2) * pace)
                if u >= 3: x.after.append(M[gp[(u - 3, 4 * (k >> 2) + 3)]])
                cv.append(x)
                if (k & 3) == 3:
                    M[gp[(u, 4 * (k >> 2))]].after.append(x)
            ex[0].after.append(M[gq[(u, 7)]])
            for j in range(17):
                if j < 16: self.add("sm", ex[j])
                if j >= 1:
                    if ad[j - 1]: self.add("sm", ad[j - 1])
                    if (j & 1) == 0: self.add("sm", cv[j // 2 - 1])
            sm_last[u] = cv[7]
            if u + 3 < U: M[gq[(u + 3, 0)]].after.append(cv[7])
            if (u & 31) >= 30: self.lastadd[(n, h)] = ad[15]
            self.first_add = getattr(self, "first_add", {})
            if first: self.first_add[(n, h)] = ad[1]
        self.dmaK(0)
        self.dmaQ(0, 0, 0, 8)
        self.dmaQ(0, 1, 0, 8, m0b=sMQB)
        self.dmaK(1); self.dmaV(0)
        n_pro1 = len(self.streams["dma"])
        self.dmaK(2); self.dmaV(1); self.dmaK(3); self.dmaV(2)
        n_pro = len(self.streams["dma"])
        self.prescale(0, 0, [])
        self.prescale(0, 1, [], addr=vQB)
        nk, nv = 4, 3
        for b in range(1, 65):
            n = (b - 1) >> 4; pb_ = (b - 1) & 15
            cnt = 0
            while cnt < 2:
                did = False
                if nv < 64 and nv + 1 - c.DV <= b and (nv < NV or nv - NV + 2 <= b):
                    self.dmaV(nv, [bar[b]]); nv += 1; did = True
                if nk < 64 and nk - c.DK <= b and (nk - NK + 1 <= b) and (nk >= NK or b >= 2):
                    self.dmaK(nk, [bar[b]]); nk += 1; did = True
                cnt += 1
                if not did: break
        assert nk == 64 and nv == 64
        for n in range(3):
            prev = self.qreads[(n, 1)] if n > 0 else self.qreads[(0, 0)]
            self.dmaQ(n + 1, 0, 0, 8, [bar[c.QB0] if n == 0 else bar[16 * n - 2]], prev)
            if n >= 1: self.epilogue(n - 1, XH[n])
            self.prescale(n + 1, 0, [self.epi_last[(n - 1, XH[n])]] if n >= 1 else [])
            if n >= 1: self.epilogue(n - 1, 1 - XH[n])
            self.dmaQ(n + 1, 1, 0, 8, [], self.qreads[(n + 1, 0)])
            self.prescale(n + 1, 1, [self.epi_last[(n - 1, XH[n])]] if n >= 1 else [])
        self.epilogue(2, 0); self.epilogue(2, 1); self.epilogue(3, 0); self.epilogue(3, 1)
        for i in range(65):
            if i < 64: bar[i].done_of += self.dK[i]
            if i >= 1: bar[i].done_of += self.dV[i - 1]
        bar[2].done_of += self.qreads[(0, 1)]
        for n in range(4):
            for h in range(2):
                for s in range(8): M[gq[(32 * n + h, s)]].after.append(self.qlast[(n, h)][s])
        for (n, h), pg in OPG.items():
            for (n2, h2), pg2 in OPG.items():
                if pg2 == pg and n2 < n: M[gp[(32 * n + h, 0)]].after.append(self.epi_last[(n2, h2)])
        items = []
        for i in range(64):
            for s in range(8):
                off = (i % NK) * KSZ + (s >> 1) * 256 + (s & 1) * 32
                x = Ins(f"ds_read_b128 a[{KF + 4 * s}:{KF + 4 * s + 3}], v{vK}" + (f" offset:{off}" if off else ""), "ds", rd=[f"v{vK}"], wr=R("a", KF + 4 * s, 4), after=[bar[i]])
                if i >= 1: x.after.append(M[gq[(2 * i - 1, s)]])
                x.dl = gq[(2 * i, s)]
                M[x.dl].after.append(x); items.append(x)
            for j in range(8):
                s, T = j >> 2, j & 3
                for e in range(2):
                    off = (i % NV) * VSZ + (4 * s + 2 * e) * 1024 + T * 256
                    r = VF + 4 * j + 2 * e
                    x = Ins(f"ds_read_b64_tr_b16 a[{r}:{r + 1}], v{vV}" + (f" offset:{off}" if off else ""), "ds", rd=[f"v{vV}"], wr=R("a", r, 2), after=[bar[i + 1]])
                    if i >= 1: x.after.append(M[gp[(2 * i - 1, j)]])
                    x.dl = gp[(2 * i, j)]
                    M[x.dl].after.append(x); items.append(x)
        items.sort(key=lambda x: x.dl)
        for x in items: self.add("ds", x)

        self.force(self.streams["dma"][n_pro1 - 1])
        if c.pf_code:
            E.force(Ins(f"global_load_dword v{vPF}, v{vPA}, s[60:61]", "gld", rd=[f"v{vPA}", "s60", "s61"], wr=[f"v{vPF}"]))
        self.force(self.streams["dma"][n_pro - 1])
        E.wait_for(self.dQ[(0, 0)])
        for x in self.qreads[(0, 0)][:4]: self.force(x)
        E.force(bar[0])
        for x in self.qreads[(0, 0)][4:]: self.force(x)
        for k in range(8): self.force(self.streams["ds"][k])
        for g in range(len(M)):
            m = M[g]
            p0 = len(E.out)
            for a in m.after: self.force(a)
            E.force(m)
            if g > 0: self.account(g - 1)
            E.gap = g
            self.gap_start = len(E.out)
            self.fill_gap(g, M[g + 1] if g + 1 < len(M) else None, bar, bargap)
        for s in ("sm", "bg", "st"):
            pass
        while any(self.peek(s) for s in self.streams):
            prog = False
            for s in ("st", "sm", "bg"):
                x = self.peek(s)
                if x is not None and E.ready(x):
                    self.take(s); prog = True; break
            if not prog:
                for s in ("sm", "bg", "st", "ds", "dq", "dma", "dmq"):
                    x = self.peek(s)
                    if x is not None:
                        self.force(x); break
        for i in E.out: check_decl(i)

    def account(self, g):
        ins = self.E.out[self.gap_start:-1]
        cyc = 8; prev_valu = False
        for k, i in enumerate(ins):
            cst = i.cost
            if i.kind == "nop": cst = 4 * (int(i.text.split()[1]) + 1)
            if k == 0 and i.kind in ("salu", "wait"): cst = 0
            if i.kind in ("ds", "dsw", "dma", "gld", "st", "bar") and prev_valu: cst += 8
            if is_valu(i.kind): prev_valu = True
            cyc += cst
        self.over.append(max(cyc, 32))

    def fill_gap(self, g, nxt, bar, bargap):
        c = self.c; E = self.E
        budget = 24; free = True
        ops = []
        if nxt is not None: ops += [x for x in E.deps(nxt)]
        if g + 1 in bargap:
            b = bar[bargap[g + 1]]
            for x in b.done_of:
                if x.pos is None: self.force(x); free = False
            ops += [x for x in b.done_of if not x.done]
            ops += [x for x in E.vq if getattr(x, "want", False) and x.gap <= g - c.VAGE]
        old = [x for x in E.lq if x.gap <= g - c.AGE]
        isbar = g in bargap
        if ops:
            E.wait_for(ops + old)
            if not free: budget -= 4
            free = False
        if isbar:
            E.force(bar[bargap[g]])
            budget = 8 if free else 4
            free = False
        if free:
            x = self.peek("dma")
            y = self.peek("st")
            if any(getattr(z, "want", False) for z in old):
                E.wait_for(old); free = False
            elif self.salu_ok("dma"):
                self.take("dma"); free = False
            elif self.salu_ok("dmq"):
                self.take("dmq"); free = False
            elif y is not None and y.kind == "salu" and self.st_salu_ok():
                self.take("st"); free = False
        def ds_ready():
            x = self.peek("ds")
            return x if (x is not None and E.ready(x)) else None

        def ds_slack():
            h = self.head["ds"]; sl = 99
            for k, x in enumerate(self.streams["ds"][h:h + 24]):
                sl = min(sl, x.dl - 1 - c.AGE - (g + k))
            return sl

        sm = self.peek("sm")
        lag = g - sm.soft if sm is not None else -99
        if not isbar:
            y = self.peek("st")
            if y is not None and y.kind == "st" and E.ready(y) and lag <= 6 and budget == 24 and (ds_ready() is None or ds_slack() >= 1):
                self.take("st")
                return
            nmem = 0
            x = self.peek(self.m0own) if self.m0own else None
            dma_ok = x is not None and x.kind == "dma" and E.ready(x) and E.out[-1].wr != ["m0", "scc"] and g - self.last_dma >= c.DMAGAP
            if ds_ready() is not None and not (dma_ok and ds_slack() >= 1):
                self.take("ds"); budget -= 4; nmem += 1
                if ds_ready() is not None and ds_slack() < 0:
                    self.take("ds"); budget -= 4; nmem += 1
            if dma_ok and nmem <= 1:
                self.take(self.m0own); budget -= c.DMACOST; nmem += 1; self.last_dma = g
            if nmem <= 1 and budget >= 20:
                x = self.peek("dq")
                if x is not None and E.ready(x):
                    self.take("dq"); budget -= 4; nmem += 1
        while budget > 0:
            x = self.peek("sm")
            if x is not None and x.soft <= g and x.cost <= budget and E.ready(x):
                self.take("sm"); budget -= x.cost; continue
            y = self.peek("bg")
            if y is not None and y.cost <= budget and E.ready(y):
                self.take("bg"); budget -= y.cost; continue
            break

    def salu_ok(self, s):
        x = self.peek(s)
        if x is None or x.kind != "salu": return False
        if "m0" not in x.wr: return True
        if self.m0own is not None: return False
        y = self.next_dma(s)
        return all(a.pos is not None for a in y.after) and all(a.done for a in y.done_of)

    def st_salu_ok(self):
        return True


def prologue_text(c):
    t = f"""    s_cmp_ge_u32 s2, 256
    s_cbranch_scc1 L_end
    s_load_dwordx4 s[4:7], s[0:1], 0
    s_load_dwordx4 s[24:27], s[0:1], 16
"""
    if c.stamp:
        t += "    s_load_dwordx2 s[70:71], s[0:1], 40\n    s_memrealtime s[72:73]\n    s_memtime s[74:75]\n"
    t += f"""    v_lshrrev_b32 v1, 6, v0
    v_and_b32 v0, 63, v0
    s_and_b32 s62, s2, 7
    v_readfirstlane_b32 s{sWave}, v1
    s_lshr_b32 s63, s2, 5
    s_lshl_b32 s63, s63, 3
    s_add_u32 s62, s62, s63
    s_bfe_u32 s63, s2, 0x20003
    s_lshl_b32 s{sKVh}, s62, 17
    s_lshl_b32 s{sQ0}, s62, 18
    s_lshl_b32 s63, s63, 16
    s_add_u32 s{sQ0}, s{sQ0}, s63
    s_lshl_b32 s63, s{sWave}, 14
    s_add_u32 s{sQ0}, s{sQ0}, s63
    s_lshl_b32 s63, s{sWave}, 11
    s_add_u32 s{sKV0}, s{sKVh}, s63
    s_add_u32 s{sMV}, s63, {VR}
    s_mul_i32 s63, s{sWave}, 2080
    s_add_u32 s{sMK}, s63, {KR}
    s_mul_i32 s{sMQ}, s{sWave}, {QSZ}
    s_add_u32 s{sMQB}, s{sMQ}, {KR + 4 * KSZ}
    s_mov_b32 s{sC}, {f32bits(CSCALE):#x}
    s_mov_b32 s{sMask}, 0xffff0000
    s_mov_b32 s{sLo}, {(127 + c.lo_exp) << 23:#x}
    s_mov_b32 s{sRng}, {0 if c.force_slow else (c.hi_exp - c.lo_exp) << 23:#x}
    v_bfe_u32 v1, v0, 2, 2
    v_lshrrev_b32 v2, 4, v0
    v_and_b32 v3, 3, v0
    v_lshlrev_b32 v4, 8, v1
    v_lshl_add_u32 v4, v2, 6, v4
    v_lshl_add_u32 v{vD}, v3, 4, v4
    s_mov_b32 s{sQ + 2}, 0x4000000
    s_mov_b32 s{sQ + 3}, 0x20000
    s_mov_b32 s{sK + 2}, 0x2000000
    s_mov_b32 s{sK + 3}, 0x20000
    s_mov_b32 s{sV + 2}, 0x2000000
    s_mov_b32 s{sV + 3}, 0x20000
    s_mov_b32 s{sO + 2}, 0x4000000
    s_mov_b32 s{sO + 3}, 0x20000
    v_lshrrev_b32 v5, 5, v0
    v_bfe_u32 v6, v0, 2, 3
    v_mul_u32_u24 v6, 1040, v6
    v_lshl_add_u32 v6, v3, 6, v6
    v_lshl_add_u32 v6, v5, 4, v6
    v_add_u32 v{vK}, {KR}, v6
    v_add_u32 v{vQ}, s{sMQ}, v6
    v_add_u32 v{vQB}, s{sMQB}, v6
    v_and_b32 v6, 31, v0
    v_lshlrev_b32 v6, 8, v6
    v_lshl_add_u32 v{vO}, v5, 4, v6
    v_lshlrev_b32 v6, 10, v5
    v_lshl_add_u32 v6, v1, 6, v6
    v_and_b32 v7, 1, v2
    v_lshl_add_u32 v6, v7, 5, v6
    v_and_b32 v7, 1, v0
    v_lshl_add_u32 v6, v7, 4, v6
    v_bfe_u32 v7, v0, 1, 1
    v_lshl_add_u32 v6, v7, 3, v6
    v_add_u32 v{vV}, {VR}, v6
    s_getpc_b64 s[60:61]
L_pc:
    s_lshr_b32 s63, s2, 3
    s_lshl_b32 s63, s63, 2
    s_add_u32 s63, s63, s{sWave}
    s_and_b32 s63, s63, 31
    s_lshl_b32 s63, s63, 12
    v_lshl_add_u32 v{vPA}, v0, 6, s63
    v_min_u32 v{vPA}, L_slow-L_pc, v{vPA}
    s_waitcnt lgkmcnt(0)
    s_mov_b32 s{sQ}, s4
    s_mov_b32 s{sQ + 1}, s5
    s_mov_b32 s{sK}, s6
    s_mov_b32 s{sK + 1}, s7
    s_mov_b32 s{sV}, s24
    s_mov_b32 s{sV + 1}, s25
    s_mov_b32 s{sO}, s26
    s_mov_b32 s{sO + 1}, s27
"""
    return t


def slow_text(c):
    t = ""
    for k in range(1, 8):
        t += f"    s_or_b64 s[62:63], s[{sFl + 2 * k}:{sFl + 2 * k + 1}], " + ("s[62:63]" if k > 1 else f"s[{sFl}:{sFl + 1}]") + "\n"
    t += "    s_cbranch_scc0 L_end\nL_slow:\n    s_mov_b32 s64, 0\n"
    for k in range(8):
        t += f"    s_cmp_lg_u64 s[{sFl + 2 * k}:{sFl + 2 * k + 1}], 0\n    s_cselect_b32 s65, {1 << k}, 0\n    s_or_b32 s64, s64, s65\n"
    t += f"""    s_waitcnt vmcnt(0) lgkmcnt(0)
    v_subrev_u32 v{vV}, {VR}, v{vV}
    v_add_u32 v{vV}, s{sMQ}, v{vV}
    s_mov_b32 s65, 0
L_unit:
    s_bitcmp1_b32 s64, s65
    s_cbranch_scc0 L_next
    s_lshr_b32 s66, s65, 1
    s_lshl_b32 s67, s66, 24
    s_add_u32 s67, s67, s{sQ0}
    s_and_b32 s68, s65, 1
    s_lshl_b32 s68, s68, 13
    s_add_u32 s67, s67, s68
    s_lshl_b32 s66, s66, 23
    s_add_u32 s66, s66, s{sKVh}
"""
    for s in range(8):
        t += f"    buffer_load_dwordx4 v[{4 * s}:{4 * s + 3}], v{vO}, s[{sQ}:{sQ + 3}], s67 offen offset:{32 * s}\n"
    kload = "".join(f"    buffer_load_dwordx4 v[{32 + 4 * s}:{35 + 4 * s}], v{vO}, s[{sK}:{sK + 3}], s68 offen offset:{32 * s}\n" for s in range(8))
    qk = "".join(f"    v_mfma_f32_32x32x16_bf16 v[64:79], v[{32 + 4 * s}:{35 + 4 * s}], v[{4 * s}:{4 * s + 3}], " + ("0" if s == 0 else "v[64:79]") + "\n" for s in range(8)) + "    s_nop 15\n"
    t += "    v_mov_b32 v80, 0xff800000\n    s_mov_b32 s68, s66\n    s_mov_b32 s69, 0\nL_p1:\n" + kload + "    s_waitcnt vmcnt(0)\n" + qk
    for j in range(0, 16, 2):
        t += f"    v_max3_f32 v80, v80, v{64 + j}, v{65 + j}\n"
    t += f"""    s_add_u32 s68, s68, 8192
    s_add_u32 s69, s69, 1
    s_cmp_lt_u32 s69, 16
    s_cbranch_scc1 L_p1
    v_mov_b32 v81, v80
    s_nop 1
    v_permlane32_swap_b32 v80, v81
    s_nop 1
    v_max_f32 v80, v80, v81
    v_mul_f32 v80, s{sC}, v80
    v_mov_b32 v82, 0
"""
    for j in range(64): t += f"    v_mov_b32 v{128 + j}, 0\n"
    t += "    s_mov_b32 s68, s66\n    s_mov_b32 s69, 0\nL_p2:\n" + kload
    t += f"    s_mov_b32 m0, s{sMQ}\n    s_add_u32 s62, s68, 4096\n"
    for p in range(4): t += f"    buffer_load_dwordx4 v{vD}, s[{sV}:{sV + 3}], s68 offen offset:{1024 * p} lds\n"
    t += f"    s_add_u32 m0, s{sMQ}, 4096\n    s_nop 0\n"
    for p in range(4): t += f"    buffer_load_dwordx4 v{vD}, s[{sV}:{sV + 3}], s62 offen offset:{1024 * p} lds\n"
    t += "    s_waitcnt vmcnt(0)\n"
    for j in range(8):
        s, T = j >> 2, j & 3
        for e in range(2):
            t += f"    ds_read_b64_tr_b16 v[{96 + 4 * j + 2 * e}:{97 + 4 * j + 2 * e}], v{vV} offset:{(4 * s + 2 * e) * 1024 + T * 256}\n"
    t += qk
    for j in range(16): t += f"    v_fma_f32 v{64 + j}, v{64 + j}, s{sC}, -v80\n"
    for j in range(16): t += f"    v_exp_f32 v{64 + j}, v{64 + j}\n"
    t += "    s_nop 0\n"
    for j in range(16): t += f"    v_add_f32 v82, v82, v{64 + j}\n"
    for k in range(8): t += f"    v_cvt_pk_bf16_f32 v{84 + k}, v{64 + 2 * k}, v{65 + 2 * k}\n"
    t += "    s_waitcnt lgkmcnt(0)\n    s_nop 1\n"
    for j in range(8):
        s, T = j >> 2, j & 3
        t += f"    v_mfma_f32_32x32x16_bf16 v[{128 + 16 * T}:{143 + 16 * T}], v[{96 + 4 * j}:{99 + 4 * j}], v[{84 + 4 * s}:{87 + 4 * s}], v[{128 + 16 * T}:{143 + 16 * T}]\n"
    t += """    s_add_u32 s68, s68, 8192
    s_add_u32 s69, s69, 1
    s_cmp_lt_u32 s69, 16
    s_cbranch_scc1 L_p2
    v_mov_b32 v81, v82
    s_nop 15
    v_permlane32_swap_b32 v82, v81
    s_nop 1
    v_add_f32 v82, v82, v81
    v_rcp_f32 v82, v82
    s_nop 1
"""
    for j in range(64): t += f"    v_mul_f32 v{128 + j}, v82, v{128 + j}\n"
    for m in range(8):
        for j in range(4): t += f"    v_cvt_pk_bf16_f32 v{128 + 8 * m + j}, v{128 + 8 * m + 2 * j}, v{129 + 8 * m + 2 * j}\n"
        t += f"    buffer_store_dwordx4 v[{128 + 8 * m}:{131 + 8 * m}], v{vO}, s[{sO}:{sO + 3}], s67 offen offset:{32 * m}\n"
    t += """    s_waitcnt vmcnt(0)
L_next:
    s_add_u32 s65, s65, 1
    s_cmp_lt_u32 s65, 8
    s_cbranch_scc1 L_unit
"""
    return t


HEAD = f"""; MHA forward, B8 H32 Sq1024 Sk512 D128 bf16. Generated by my own scheduler script (gen/gen.py).
; Fast path uses shift 0 in exp2(c*q.k); every row sum is range-checked at run time and any
; @launch grid=(256,1,1) block=(256,1,1) lds={LDS_BYTES}
.amdgcn_target "amdgcn-amd-amdhsa--gfx950"
.text
.globl {NAME}_kernel
.p2align 8
.type {NAME}_kernel,@function
{NAME}_kernel:
"""

TAIL = f"""L_end:
    s_endpgm
.section .rodata,"a"
.p2align 6
.amdhsa_kernel {NAME}_kernel
  .amdhsa_next_free_vgpr 512
  .amdhsa_next_free_sgpr 96
  .amdhsa_accum_offset 256
  .amdhsa_group_segment_fixed_size 0
  .amdhsa_kernarg_size 48
  .amdhsa_user_sgpr_count 2
  .amdhsa_user_sgpr_kernarg_segment_ptr 1
  .amdhsa_system_sgpr_workgroup_id_x 1
.end_amdhsa_kernel
"""


def generate(c, verbose=True):
    g = Gen(c)
    g.build()
    body = g.E.text()
    if verbose:
        ov = g.over
        tot = sum(ov)
        print(f"instrs {len(g.E.out)}  est cycles {tot}  per mfma {tot / len(ov):.2f}  per block", [sum(ov[i:i + 512]) for i in range(0, 2048, 512)], file=sys.stderr)
        from collections import Counter
        print(Counter(i.kind for i in g.E.out), file=sys.stderr)
        last = max(i.pos for i in g.M); first = g.M[0].pos
        print("pre-mfma instrs", first, " tail instrs", len(g.E.out) - last - 1, file=sys.stderr)
    return HEAD + prologue_text(c) + body + slow_text(c) + TAIL, g


if __name__ == "__main__":
    ap = argparse.ArgumentParser()
    ap.add_argument("-o", default=f"cdna_kernels/{NAME}.s")
    ap.add_argument("-D", action="append", default=[])
    a = ap.parse_args()
    c = Cfg()
    for d in a.D:
        k, v = d.split("=", 1)
        assert hasattr(c, k), k
        old = getattr(c, k)
        setattr(c, k, v if isinstance(old, str) else type(old)(eval(v)))
    txt, _ = generate(c)
    open(a.o, "w").write(txt)
    print("wrote", a.o, len(txt), "bytes", file=sys.stderr)
```

```python
from mbgen import *
def init():
    s = "    v_lshlrev_b32 v250, 4, v255\n"
    for i in range(0, 128, 4):
        s += f"    buffer_load_dwordx4 v[{i}:{i+3}], v250, s[12:15], 0 offen offset:{(i//4)*64%4096}\n"
        s += f"    v_add_u32 v250, 0x2000, v250\n"
    s += "    s_waitcnt vmcnt(0)\n"
    for i in range(64, 128):
        s += f"    v_and_b32 v{i}, 0xffff0000, v{i}\n"
    for i in range(128, 256):
        s += f"    v_mov_b32 v{i}, 0\n"
    s += "    v_mbcnt_lo_u32_b32 v127, -1, 0\n    v_mbcnt_hi_u32_b32 v127, -1, v127\n    v_lshlrev_b32 v126, 3, v127\n    v_lshlrev_b32 v127, 4, v127\n"
    s += "    s_mov_b32 m0, 0x8000\n"
    return s
def mf32(i):
    d = 128 + 16 * (i % 8)
    a = 4 * (i % 8); b = 32 + 4 * ((i // 2) % 8)
    return f"    v_mfma_f32_32x32x16_bf16 v[{d}:{d+15}], v[{a}:{a+3}], v[{b}:{b+3}], v[{d}:{d+15}]\n"
def mf16(i):
    d = 128 + 4 * (i % 32)
    a = 4 * (i % 8); b = 32 + 4 * ((i // 2) % 8)
    return f"    v_mfma_f32_16x16x32_bf16 v[{d}:{d+3}], v[{a}:{a+3}], v[{b}:{b+3}], v[{d}:{d+3}]\n"
cnt = [0]
def f(kind):
    cnt[0] += 1
    j = cnt[0]
    src = 64 + j % 32; dst = 96 + j % 16
    if kind == "add": return f"    v_add_f32 v{dst}, v{src}, v{dst}\n"
    if kind == "exp": return f"    v_exp_f32 v{dst}, v{src}\n"
    if kind == "cvt": return f"    v_cvt_pk_bf16_f32 v{dst}, v{src}, v{64+(j+1)%32}\n"
    if kind == "fma": return f"    v_fma_f32 v{dst}, v{src}, s30, v{64+(j+7)%32}\n"
    if kind == "max3": return f"    v_max3_f32 v{dst}, v{src}, v{64+(j+1)%32}, v{dst}\n"
    if kind == "pkadd":
        s2 = 64 + 2 * (j % 16); d2 = 96 + 2 * (j % 8)
        return f"    v_pk_add_f32 v[{d2}:{d2+1}], v[{s2}:{s2+1}], v[{d2}:{d2+1}]\n"
    if kind == "pkmul":
        s2 = 64 + 2 * (j % 16); d2 = 96 + 2 * (j % 8)
        return f"    v_pk_mul_f32 v[{d2}:{d2+1}], v[{s2}:{s2+1}], v[{64+2*((j+3)%16)}:{65+2*((j+3)%16)}]\n"
    if kind == "dot2": return f"    v_dot2_f32_bf16 v{dst}, v{j%32}, v{32+j%32}, v{dst}\n"
    if kind == "dot2c": return f"    v_dot2c_f32_bf16 v{dst}, v{j%32}, v{32+j%32}\n"
    if kind == "ds128":
        d4 = 112 + 4 * (j % 3)
        return f"    ds_read_b128 v[{d4}:{d4+3}], v127 offset:{(j%16)*1024}\n"
    if kind == "dstr":
        d2 = 112 + 2 * (j % 6)
        return f"    ds_read_b64_tr_b16 v[{d2}:{d2+1}], v126 offset:{(j%16)*512}\n"
    if kind == "wait": return "    s_waitcnt lgkmcnt(15)\n"
    if kind == "wait4": return "    s_waitcnt lgkmcnt(4)\n"
    if kind == "nop": return "    s_nop 0\n"
    if kind == "salu": return f"    s_add_u32 s{40+j%8}, s{40+j%8}, 1\n"
    if kind == "smf": return f"    v_smfmac_f32_16x16x64_bf16 v[96:99], v[0:3], v[8:15], v16\n"
    if kind == "mf16": return f"    v_mfma_f32_16x16x32_bf16 v[96:99], v[0:3], v[8:11], v[96:99]\n"
    if kind == "mf4": return f"    v_mfma_f32_4x4x4_16b_bf16 v[96:99], v[0:1], v[8:9], v[96:99]\n"
    if kind == "dma": return f"    buffer_load_dwordx4 v127, s[12:15], 0 offen offset:{(j%4)*1024} lds\n"
    if kind == "accr": return f"    v_accvgpr_read_b32 v{dst}, a{j%64}\n"
    raise KeyError(kind)
def body(mf, pattern, n=32):
    s = ""
    for i in range(n):
        if mf: s += mf(i)
        for k in pattern[i % len(pattern)]:
            s += f(k)
    return s
```

```python
from mbgen import *
import mb1_common as C
tests = []
def fill_lds():
    s = ""
    for i in range(32):
        s += f"    ds_write_b128 v127, v[{(i%16)*4}:{(i%16)*4+3}] offset:{i*1024}\n"
        if i % 8 == 7: s += "    s_waitcnt lgkmcnt(0)\n"
    return s
def add(desc, mf, pattern, shape=32, block=256, init=None, **kw):
    nv = 256 if block == 512 else 512
    n = 64 if shape == 32 else 128
    it = 32 if block == 256 else 16
    tests.append(dict(desc=f"[{block//64}w] {desc}", body=C.body(mf, pattern, n), iters=it, block=block, lds=131072, nunit=64 * (block // 256), init=(init or C.init()) + fill_lds(), nvgpr=nv, accum=256, **kw))
def mk(shape, fa, fb, fd, acc="v", ab="v", typ="bf16"):
    w = 16 if shape == 32 else 4
    nm = ("32x32x16" if shape == 32 else "16x16x32") + "_" + typ
    def mf(i):
        d = (128 if acc == "v" else 0) + w * fd(i)
        a = (0 if ab == "v" else 128) + 4 * fa(i); b = (32 if ab == "v" else 160) + 4 * fb(i)
        return f"    v_mfma_f32_{nm} {acc}[{d}:{d+w-1}], {ab}[{a}:{a+3}], {ab}[{b}:{b+3}], {acc}[{d}:{d+w-1}]\n"
    return mf
def init_acc():
    s = C.init()
    for i in range(128): s += f"    v_accvgpr_write_b32 a{i}, 0\n"
    for i in range(64): s += f"    v_accvgpr_write_b32 a{128+i}, v{i}\n"
    return s
def init_pos(which):
    s = C.init()
    lo = 0 if which == "A" else 32
    for i in range(lo, lo + 32):
        s += f"    v_and_b32 v96, 0xffff0000, v{i}\n    v_lshlrev_b32 v97, 16, v{i}\n    v_exp_f32 v96, v96\n    v_exp_f32 v97, v97\n    s_nop 1\n    v_cvt_pk_bf16_f32 v{i}, v97, v96\n"
    return s
def init_zero():
    s = C.init()
    for i in range(64): s += f"    v_mov_b32 v{i}, 0\n"
    return s
V = lambda i: i % 8
W = lambda i: (i * 3 + i // 8) % 8
```

```python
from mbgen import *
import mb1_common as C
from mb4_common import *
tests = []
mixA = [["ds128", "exp", "add", "cvt", "add"], ["wait", "exp", "add", "add"], ["dstr", "dstr", "exp", "add", "cvt"], ["wait", "exp", "add", "add", "add"]]
m32 = mk(32, V, W, lambda i: i % 8)
def pf(nbytes):
    s = "    s_getpc_b64 s[40:41]\n    v_lshlrev_b32 v120, 6, v255\n"
    for k in range(0, nbytes, 16384):
        s += f"    global_load_dword v121, v120, s[40:41]\n    v_add_u32 v120, 0x4000, v120\n"
    s += "    s_waitcnt vmcnt(0)\n"
    return s
def init2():
    s = C.init().replace("    v_mov_b32 v255, 0\n", "")
    return s
def f2(kind, j=[0]):
    j[0] += 1
    if kind == "st": return f"    buffer_store_dwordx4 v[96:99], v127, s[8:11], s31 offen offset:{(j[0]%4)*1024}\n"
    if kind == "dsw": return f"    ds_write_b128 v127, v[96:99] offset:{32768+(j[0]%16)*1024}\n"
    if kind == "gld": return f"    buffer_load_dwordx4 v[112:115], v127, s[12:15], 0 offen offset:{(j[0]%4)*1024}\n"
    if kind == "m0": return "    s_mov_b32 m0, 0x8000\n"
    if kind == "bar": return "    s_barrier\n"
    return C.f(kind)
def body(mf, pattern, n):
    s = ""
    for i in range(n):
        s += mf(i)
        for k in pattern[i % len(pattern)]: s += f2(k)
    return s
base = ["exp", "add", "add", "add"]
ini = C.init() + fill_lds() + "    s_lshl_b32 s31, s2, 12\n    s_and_b32 s31, s31, 0x7f000\n    s_add_u32 s31, s31, 0x80000\n"
def add(desc, pat):
    tests.append(dict(desc=desc, body=body(m32, pat, 64), iters=32, block=256, lds=131072, nunit=64, init=ini, nvgpr=512, accum=256))
```

```python
import json, subprocess, os
CLANG = "clang"
def kernel_text(name, body, iters, nvgpr=512, accum=256, init="", pre=""):
    t = f"""
.text
.globl {name}
.p2align 8
.type {name},@function
{name}:
    s_load_dwordx2 s[4:5], s[0:1], 0
    s_load_dwordx2 s[6:7], s[0:1], 8
    s_waitcnt lgkmcnt(0)
    s_mov_b32 s8, s4
    s_mov_b32 s9, s5
    s_mov_b32 s10, 0x100000
    s_mov_b32 s11, 0x00020000
    s_mov_b32 s12, s6
    s_mov_b32 s13, s7
    s_mov_b32 s14, 0x10000000
    s_mov_b32 s15, 0x00020000
    v_mov_b32 v255, v0
    v_lshrrev_b32 v254, 6, v0
    s_nop 1
    v_readfirstlane_b32 s30, v254
{init}
    s_mov_b32 s16, {iters}
    s_waitcnt vmcnt(0) lgkmcnt(0)
    s_barrier
{pre}
    s_memtime s[20:21]
    s_memrealtime s[24:25]
    s_waitcnt lgkmcnt(0)
.p2align 6
L_{name}:
{body}
    s_sub_u32 s16, s16, 1
    s_cmp_lg_u32 s16, 0
    s_cbranch_scc1 L_{name}
    s_waitcnt vmcnt(0) lgkmcnt(0)
    s_nop 15
    s_nop 15
    s_memtime s[22:23]
    s_memrealtime s[26:27]
    s_waitcnt lgkmcnt(0)
    s_sub_u32 s22, s22, s20
    s_sub_u32 s26, s26, s24
    v_mov_b32 v0, s22
    v_mov_b32 v1, s26
    s_lshl_b32 s17, s2, 4
    s_add_u32 s17, s17, s30
    s_lshl_b32 s17, s17, 3
    v_mov_b32 v2, s17
    buffer_store_dwordx2 v[0:1], v2, s[8:11], 0 offen
    s_waitcnt vmcnt(0)
    s_endpgm
.section .rodata,"a"
.p2align 6
.amdhsa_kernel {name}
  .amdhsa_next_free_vgpr {nvgpr}
  .amdhsa_next_free_sgpr 96
  .amdhsa_accum_offset {accum}
  .amdhsa_group_segment_fixed_size 0
  .amdhsa_kernarg_size 16
  .amdhsa_user_sgpr_count 2
  .amdhsa_user_sgpr_kernarg_segment_ptr 1
  .amdhsa_system_sgpr_workgroup_id_x 1
.end_amdhsa_kernel
"""
    return t
def meta(names_wg):
    s = "\n.amdgpu_metadata\n---\namdhsa.version: [1, 2]\namdhsa.kernels:\n"
    for n, wg, nv in names_wg:
        s += f"""  - .name: {n}
    .symbol: {n}.kd
    .kernarg_segment_size: 16
    .kernarg_segment_align: 8
    .group_segment_fixed_size: 0
    .private_segment_fixed_size: 0
    .wavefront_size: 64
    .sgpr_count: 96
    .vgpr_count: {nv}
    .max_flat_workgroup_size: {wg}
    .args:
      - {{.name: kernargs, .size: 16, .offset: 0, .value_kind: by_value}}
"""
    return s + "...\n.end_amdgpu_metadata\n"
def build(tag, tests):
    man = []
    for gi in range(0, len(tests), 16):
        grp = tests[gi:gi+16]
        txt = '.amdgcn_target "amdgcn-amd-amdhsa--gfx950"\n'
        nw = []
        for i, t in enumerate(grp):
            name = f"k{gi+i}"
            nv = t.get("nvgpr", 512); ac = t.get("accum", 256)
            txt += kernel_text(name, t["body"], t["iters"], nv, ac, t.get("init", ""), t.get("pre", ""))
            nw.append((name, t["block"], nv))
            man.append(dict(co=f"{tag}_{gi//16}.co", name=name, desc=t["desc"], block=t["block"], lds=t.get("lds", 0),
                            grid=t.get("grid", 256), nunit=t["nunit"] * t["iters"], reps=t.get("reps", 3)))
        txt += meta(nw)
        sp = f"{tag}_{gi//16}.asmtxt"
        open(sp, "w").write(txt)
        r = subprocess.run([CLANG, "-x", "assembler", "-target", "amdgcn-amd-amdhsa", "-mcpu=gfx950", sp, "-o", f"{tag}_{gi//16}.co"], capture_output=True, text=True)
        if r.returncode:
            print(r.stderr[:3000]); raise SystemExit(1)
    json.dump(man, open(f"{tag}.json", "w"))
    print("push:", json.dumps(["bench/hiprt.py", "bench/mbrun.py", f"bench/{tag}.json"] + sorted({"bench/" + m["co"] for m in man})))
```

```python
from mb6_common import *
N = ["dstr", "exp", "add", "add", "add"]; NN = ["dstr", "dstr", "exp", "add", "add"]; Vv = ["exp", "add", "add", "add", "add"]; L = ["exp", "add"]
K = ["ds128", "exp", "add", "add", "add"]
add("ref N x8", [N])
for k in ("st", "dsw"):
    add(f"N..N [{k}] N", [[k]] + [N] * 15)
    add(f"N..N [{k}] NN", [[k], NN] + [N] * 14)
    add(f"N..N [{k}] V", [[k], Vv] + [N] * 14)
    add(f"N..N [{k}] V V", [[k], Vv, Vv] + [N] * 13)
    add(f"N..V [{k}] V", [[k], Vv] + [N] * 13 + [Vv])
    add(f"N..V [{k}] N", [[k]] + [N] * 14 + [Vv])
    add(f"N..N [{k}] L", [[k], L] + [N] * 14)
    add(f"N..N [{k}] [t,E]", [[k], ["dstr", "exp"]] + [N] * 14)
    add(f"N..L [{k}] L", [[k], L] + [N] * 13 + [L])
    add(f"N..N [wait,{k}] V", [["wait", k], Vv] + [N] * 14)
    add(f"N..N [salu,{k}] V", [["salu", k], Vv] + [N] * 14)
add("N..N [dma,E,add] N", [["dma", "exp", "add"]] + [N] * 15)
add("N..N [dma,E,add,add] N", [["dma", "exp", "add", "add"]] + [N] * 15)
add("N..N [dma,E,add,add] V", [["dma", "exp", "add", "add"], Vv] + [N] * 14)
add("K..K [dma,E,add,add] K", [["dma", "exp", "add", "add"]] + [K] * 15)
add("K..K [dma,E,add] K", [["dma", "exp", "add"]] + [K] * 15)
add("N..N [bar,E] N", [["bar", "exp"]] + [N] * 15)
add("N..N [bar,E,add] N", [["bar", "exp", "add"]] + [N] * 15)
add("N..N [bar,E,add,add] N", [["bar", "exp", "add", "add"]] + [N] * 15)
add("N..V [bar,E,add] N", [["bar", "exp", "add"]] + [N] * 14 + [Vv])
for t in tests: t["iters"] = 128
build("mb10", tests)
```

```python
from mbgen import *
import mb1_common as C
from mb4_common import *
tests = []
def mk2(fa, oa, fb, ob, fd, od, chain, zero=False):
    def mf(i):
        d = (128 if fd == "v" else 0) + od + 4 * ((i // chain) % 24)
        a = (0 if fa == "v" else 128) + oa + 4 * (i % 7); b = (32 if fb == "v" else 160) + ob + 4 * ((i * 3) % 7)
        cc = "0" if zero else f"{fd}[{d}:{d+3}]"
        return f"    v_mfma_f32_16x16x32_bf16 {fd}[{d}:{d+3}], {fa}[{a}:{a+3}], {fb}[{b}:{b+3}], {cc}\n"
    return mf
def a(desc, mf, pat):
    tests.append(dict(desc=desc, body=C.body(mf, pat, 96), iters=48, block=256, lds=131072, nunit=96, init=init_acc() + fill_lds(), nvgpr=512, accum=256))
for nm, args in (("vvv 000", ("v", 0, "v", 0, "v", 0)), ("vvv 020", ("v", 0, "v", 2, "v", 0)), ("vvv 002", ("v", 0, "v", 0, "v", 2)),
                 ("avv 000", ("a", 0, "v", 0, "v", 0)), ("aav 000", ("a", 0, "a", 0, "v", 0)), ("aaa 000", ("a", 0, "a", 0, "a", 0)), ("ava 020", ("a", 0, "v", 2, "a", 0))):
    a(nm + " chain1 3add", mk2(*args, 1), [["add"] * 3])
    a(nm + " chain1 E/2add", mk2(*args, 1), [["exp"], ["add", "add"]])
a("aav zeroC 3add", mk2("a", 0, "a", 0, "v", 0, 1, True), [["add"] * 3])
a("aav chain4 3add", mk2("a", 0, "a", 0, "v", 0, 4), [["add"] * 3])
for k in (2, 3, 4, 5, 6, 7):
    a(f"aav chain96 {k}add", mk2("a", 0, "a", 0, "v", 0, 96), [["add"] * k])
for k in (2, 4, 5):
    a(f"aav chain1 {k}add", mk2("a", 0, "a", 0, "v", 0, 1), [["add"] * k])
build("mb18", tests)
```
